```python
import torch

def _softmax(x, axis=-1):
    return torch.softmax(x, dim=axis)

def _gelu(x):
    return torch.nn.functional.gelu(x, approximate='tanh')

def _silu(x):
    return torch.nn.functional.silu(x)

def _sigmoid(x):
    return torch.sigmoid(x)

def _layernorm(x, axis=-1, eps=1e-05):
    m = x.mean(dim=axis, keepdim=True)
    v = x.var(dim=axis, keepdim=True, unbiased=False)
    return (x - m) / torch.sqrt(v + eps)

def _scatter_add(tgt, idx, src, axis=0):
    return tgt.clone().index_add_(axis, idx, src)

def _segment_sum(src, seg, n):
    out = torch.zeros((n,) + src.shape[1:], dtype=src.dtype)
    return out.index_add_(0, seg, src)

def _pad(x, pw):
    flat = tuple((v for pair in reversed(pw) for v in pair))
    return torch.nn.functional.pad(x, flat)
kernel_name = 'standalone__kv_cache_quant_pre_rope_vs_post_rope__prompt'

def setup_inputs():

    _w = lambda a: (lambda t: t.to(torch.bfloat16) if t.is_floating_point() else t)(torch.as_tensor(a))
    B, Sq, Skv = (1, 2048, 2048)
    H, Dh0 = (8, 128)
    G = 64 if 64 > 0 else Dh0
    G = max(2, G // 2 * 2)
    Dh = max(G, Dh0 // G * G)
    Skv = max(Skv, Sq)
    ng = Dh // G
    bits = 3 if 3 > 1 else 4
    bits = max(2, min(8, bits))
    qmax = (1 << bits) - 1
    half = Dh // 2
    inv = 1.0 / 10000.0 ** (torch.arange(half) / max(1, half))
    ang_k = torch.arange(Skv)[:, None] * inv[None, :]
    ang_q = torch.arange(Skv - Sq, Skv)[:, None] * inv[None, :]
    kc = torch.cat([torch.cos(ang_k), torch.cos(ang_k)], dim=-1)
    ks = torch.cat([torch.sin(ang_k), torch.sin(ang_k)], dim=-1)
    qc = torch.cat([torch.cos(ang_q), torch.cos(ang_q)], dim=-1)
    qs = torch.cat([torch.sin(ang_q), torch.sin(ang_q)], dim=-1)
    qk_i = torch.randint(0, qmax + 1, (B, H, Skv, Dh)).to(torch.int32)
    qv_i = torch.randint(0, qmax + 1, (B, H, Skv, Dh)).to(torch.int32)
    ksc = torch.abs((lambda *s: torch.randn(*s, dtype=torch.bfloat16) * 0.4)(B, H, Skv, ng)) * 0.1 + 0.01
    kzp = torch.full((B, H, Skv, ng), qmax / 2.0)
    vsc = torch.abs((lambda *s: torch.randn(*s, dtype=torch.bfloat16) * 0.4)(B, H, Skv, ng)) * 0.1 + 0.01
    vzp = torch.full((B, H, Skv, ng), qmax / 2.0)
    return {'q': _w((lambda *s: torch.randn(*s, dtype=torch.bfloat16) * 6.4)(B, H, Sq, Dh) * 0.5), 'qk': _w(qk_i), 'k_scales': _w(ksc), 'k_zeros': _w(kzp), 'qv': _w(qv_i), 'v_scales': _w(vsc), 'v_zeros': _w(vzp), 'q_cos': _w(qc), 'q_sin': _w(qs), 'k_cos': _w(kc), 'k_sin': _w(ks)}

def reference(q, qk, k_scales, k_zeros, qv, v_scales, v_zeros, q_cos, q_sin, k_cos, k_sin):
    B, H, Sq, Dh = q.shape
    ng = k_scales.shape[-1]
    G = Dh // ng
    half = Dh // 2
    ks = (lambda x, n, axis: torch.repeat_interleave(x, n, dim=axis))(k_scales, G, axis=-1)
    kz = (lambda x, n, axis: torch.repeat_interleave(x, n, dim=axis))(k_zeros, G, axis=-1)
    k = ((lambda x, dt: x.to(dt))(qk, q.dtype) - kz) * ks
    vs = (lambda x, n, axis: torch.repeat_interleave(x, n, dim=axis))(v_scales, G, axis=-1)
    vz = (lambda x, n, axis: torch.repeat_interleave(x, n, dim=axis))(v_zeros, G, axis=-1)
    v = ((lambda x, dt: x.to(dt))(qv, q.dtype) - vz) * vs
    k1 = k[..., :half].clone()
    k2 = k[..., half:].clone()
    krh = torch.concatenate([-k2, k1], axis=-1)
    kr = k * k_cos[None, None, :, :] + krh * k_sin[None, None, :, :]
    q1 = q[..., :half].clone()
    q2 = q[..., half:].clone()
    qrh = torch.concatenate([-q2, q1], axis=-1)
    qr = q * q_cos[None, None, :, :] + qrh * q_sin[None, None, :, :]
    logits = torch.einsum('bhqd,bhkd->bhqk', qr, kr) * float(Dh) ** (-0.5)
    attn = _softmax(logits, axis=-1)
    out = torch.einsum('bhqk,bhkd->bhqd', attn, v)
    return out
```

```python
NAME = "standalone__kv_cache_quant_pre_rope_vs_post_rope__prompt"
KN = NAME + "_kernel"
def header(launch_lines):
    return "\n".join("; @launch " + l for l in launch_lines) + '\n.amdgcn_target "amdgcn-amd-amdhsa--gfx950"\n.text\n'
def kernel_begin(name):
    return f".globl {name}\n.p2align 8\n.type {name},@function\n{name}:\n"
def kernel_desc(name, vgpr, sgpr=102, accum=None, extra=""):
    if accum is None: accum = min(256, (vgpr + 3) // 4 * 4)
    return f""".section .rodata,"a"
.p2align 6
.amdhsa_kernel {name}
  .amdhsa_next_free_vgpr {vgpr}
  .amdhsa_next_free_sgpr {sgpr}
  .amdhsa_accum_offset {accum}
  .amdhsa_group_segment_fixed_size 0
  .amdhsa_kernarg_size 112
  .amdhsa_user_sgpr_count 2
  .amdhsa_user_sgpr_kernarg_segment_ptr 1
  .amdhsa_system_sgpr_workgroup_id_x 1
{extra}.end_amdhsa_kernel
.text
"""
```

```python
import sys, math
from gen_common import *

CS = 1.4426950408889634 / math.sqrt(128.0)
import struct
def f2u(x): return struct.unpack("<I", struct.pack("<f", x))[0]

WS_KV = 0
WS_Q  = 0x800000
WS_N  = 0xC00000
QN_OFF = 0x10000

class A:
    def __init__(self): self.l = []
    def __call__(self, s): self.l.append("    " + s)
    def lab(self, s): self.l.append(s + ":")
    def text(self): return "\n".join(self.l) + "\n"

def srd(a, d, lo, hi, nrec):
    a(f"s_mov_b32 s{d}, s{lo}")
    a(f"s_and_b32 s{d+1}, s{hi}, 0xffff")
    a(f"s_mov_b32 s{d+2}, {nrec}")
    a(f"s_mov_b32 s{d+3}, 0x00020000")

def gen_prep():
    a = A()
    a("s_cmp_ge_u32 s2, 768")
    a("s_cbranch_scc1 P_done")
    a("s_lshr_b32 s3, s2, 8")
    a("s_and_b32 s4, s2, 255")
    a("s_and_b32 s5, s4, 7")
    a("s_lshr_b32 s4, s4, 3")
    a("s_and_b32 s6, s4, 7")
    a("s_lshr_b32 s4, s4, 3")
    a("s_lshl_b32 s4, s4, 3")
    a("s_add_u32 s4, s4, s5")
    a("v_lshrrev_b32 v1, 6, v0")
    a("v_and_b32 v0, 63, v0")
    a("v_readfirstlane_b32 s5, v1")
    a("s_lshl_b32 s4, s4, 6")
    a("s_lshl_b32 s5, s5, 4")
    a("s_add_u32 s7, s4, s5")
    a("s_load_dwordx2 s[48:49], s[0:1], 104")
    a("s_cmp_eq_u32 s3, 1")
    a("s_cbranch_scc1 P_V")
    a("s_cmp_eq_u32 s3, 2")
    a("s_cbranch_scc1 P_Q")

    a("s_load_dwordx2 s[36:37], s[0:1], 8")
    a("s_load_dwordx2 s[40:41], s[0:1], 72")
    a("s_load_dwordx2 s[42:43], s[0:1], 80")
    a("s_load_dwordx2 s[44:45], s[0:1], 16")
    a("s_load_dwordx2 s[46:47], s[0:1], 24")
    a("v_lshrrev_b32 v5, 3, v0")
    a("v_and_b32 v6, 7, v0")
    a("v_lshlrev_b32 v1, 9, v5")
    a("v_lshl_add_u32 v1, v6, 4, v1")
    a("v_lshlrev_b32 v2, 8, v5")
    a("v_lshl_add_u32 v2, v6, 3, v2")
    a("v_lshlrev_b32 v3, 2, v5")
    a("v_lshlrev_b32 v4, 9, v6")
    a("v_lshl_add_u32 v4, v5, 4, v4")
    a("s_lshl_b32 s50, s6, 20")
    a("s_lshl_b32 s51, s7, 9")
    a("s_add_u32 s50, s50, s51")
    a("s_add_u32 s51, s50, 4096")
    a("s_lshl_b32 s52, s7, 8")
    a("s_lshl_b32 s53, s6, 13")
    a("s_lshl_b32 s54, s7, 2")
    a("s_add_u32 s53, s53, s54")
    a("s_lshl_b32 s54, s6, 20")
    a("s_lshr_b32 s55, s7, 5")
    a("s_lshl_b32 s55, s55, 14")
    a("s_add_u32 s54, s54, s55")
    a("s_and_b32 s55, s7, 31")
    a("s_lshl_b32 s55, s55, 4")
    a("s_add_u32 s54, s54, s55")
    a("s_add_u32 s55, s54, 4096")
    a("s_waitcnt lgkmcnt(0)")
    srd(a, 12, 36, 37, 8388608)
    srd(a, 16, 40, 41, 524288)
    srd(a, 20, 42, 43, 524288)
    srd(a, 24, 44, 45, 65536)
    srd(a, 28, 46, 47, 65536)
    srd(a, 32, 48, 49, 0x10000000)
    for un in range(2):
        a(f"buffer_load_dword v{72+un}, v3, s[24:27], s53 offen offset:{un*32}")
        a(f"buffer_load_dword v{74+un}, v3, s[28:31], s53 offen offset:{un*32}")
    for un in range(2):
        for rho in range(2):
            b = 8 + 16 * (2 * un + rho)
            so = "s50" if un == 0 else "s51"
            a(f"buffer_load_dwordx4 v[{b}:{b+3}], v1, s[12:15], {so} offen offset:{rho*128}")
            a(f"buffer_load_dwordx4 v[{b+4}:{b+7}], v1, s[12:15], {so} offen offset:{rho*128+256}")
            o = un * 2048 + rho * 64
            a(f"buffer_load_dwordx2 v[{b+8}:{b+9}], v2, s[16:19], s52 offen offset:{o}")
            a(f"buffer_load_dwordx2 v[{b+10}:{b+11}], v2, s[16:19], s52 offen offset:{o+128}")
            a(f"buffer_load_dwordx2 v[{b+12}:{b+13}], v2, s[20:23], s52 offen offset:{o}")
            a(f"buffer_load_dwordx2 v[{b+14}:{b+15}], v2, s[20:23], s52 offen offset:{o+128}")
    a("v_mov_b32 v7, 0xffff0000")
    def rope_block(b_lo, b_hi, is_f32_codes, bcl, bch, bsl, bsh, nrm, outr, scale=None):
        for j in range(4):
            def unp(dst, base):
                if j % 2 == 0: a(f"v_lshlrev_b32 v{dst}, 16, v{base + j//2}")
                else: a(f"v_and_b32 v{dst}, v7, v{base + j//2}")
            unp(80, bcl); unp(81, bch); unp(82, bsl); unp(83, bsh)
            lo, hi = b_lo + j, b_hi + j
            a(f"v_mul_f32 v84, v{hi}, v82")
            a(f"v_mul_f32 v85, v{lo}, v83")
            a(f"v_fma_f32 v{88+j}, v{lo}, v80, -v84")
            a(f"v_fma_f32 v{92+j}, v{hi}, v81, v85")
            if scale is not None:
                a(f"v_mul_f32 v{88+j}, {scale}, v{88+j}")
                a(f"v_mul_f32 v{92+j}, {scale}, v{92+j}")
            a(f"v_fmac_f32 v{nrm}, v{88+j}, v{88+j}")
            a(f"v_fmac_f32 v{nrm}, v{92+j}, v{92+j}")
        a(f"v_cvt_pk_bf16_f32 v{outr}, v88, v89")
        a(f"v_cvt_pk_bf16_f32 v{outr+1}, v90, v91")
        a(f"v_cvt_pk_bf16_f32 v{outr+2}, v92, v93")
        a(f"v_cvt_pk_bf16_f32 v{outr+3}, v94, v95")
    def red8(r):
        a("s_nop 1")
        a(f"v_add_f32_dpp v{r}, v{r}, v{r} quad_perm:[1,0,3,2] row_mask:0xf bank_mask:0xf")
        a("s_nop 1")
        a(f"v_add_f32_dpp v{r}, v{r}, v{r} quad_perm:[2,3,0,1] row_mask:0xf bank_mask:0xf")
        a("s_nop 1")
        a(f"v_add_f32_dpp v{r}, v{r}, v{r} row_half_mirror row_mask:0xf bank_mask:0xf")
    a("v_mov_b32 v96, 0")
    a("v_mov_b32 v97, 0")
    nload_after = lambda idx: (3 - idx) * 6
    nstores = 0
    for un in range(2):
        for rho in range(2):
            idx = 2 * un + rho
            b = 8 + 16 * idx
            a(f"s_waitcnt vmcnt({nload_after(idx) + nstores})")
            if rho == 0:
                a(f"v_lshlrev_b32 v76, 16, v{72+un}")
                a(f"v_and_b32 v77, v7, v{72+un}")
                a(f"v_lshlrev_b32 v78, 16, v{74+un}")
                a(f"v_and_b32 v79, v7, v{74+un}")
                a(f"v_mul_f32 v78, v78, v76")
                a(f"v_mul_f32 v79, v79, v77")
            for j in range(4):
                a(f"v_cvt_f32_i32 v{b+j}, v{b+j}")
                a(f"v_cvt_f32_i32 v{b+4+j}, v{b+4+j}")
            for j in range(4):
                a(f"v_fma_f32 v{b+j}, v{b+j}, v76, -v78")
                a(f"v_fma_f32 v{b+4+j}, v{b+4+j}, v77, -v79")
            outr = 100 + 4 * idx
            rope_block(b, b + 4, True, b + 8, b + 10, b + 12, b + 14, 96 + un, outr)
            so = "s54" if rho == 0 else "s55"
            a(f"buffer_store_dwordx4 v[{outr}:{outr+3}], v4, s[32:35], {so} offen offset:{un*128}")
            nstores += 1
    red8(96); red8(97)
    a("s_nop 1")
    a("v_max_f32 v96, v96, v97")
    a("s_nop 1")
    a("v_max_f32_dpp v96, v96, v96 row_mirror row_mask:0xf bank_mask:0xf")
    a("s_nop 1")
    a("v_max_f32_dpp v96, v96, v96 row_bcast:15 row_mask:0xa bank_mask:0xf")
    a("s_nop 1")
    a("v_max_f32_dpp v96, v96, v96 row_bcast:31 row_mask:0xc bank_mask:0xf")
    a("s_nop 1")
    a("v_readlane_b32 s56, v96, 63")
    a("s_lshl_b32 s57, s6, 9")
    a("s_lshr_b32 s58, s7, 2")
    a("s_add_u32 s57, s57, s58")
    a(f"s_add_u32 s57, s57, {WS_N}")
    a("v_mov_b32 v98, s56")
    a("v_mov_b32 v99, 0")
    a("s_mov_b64 exec, 1")
    a("buffer_store_dword v98, v99, s[32:35], s57 offen")
    a("s_endpgm")

    a.lab("P_Q")
    a("s_load_dwordx2 s[36:37], s[0:1], 0")
    a("s_load_dwordx2 s[40:41], s[0:1], 56")
    a("s_load_dwordx2 s[42:43], s[0:1], 64")
    a("v_lshrrev_b32 v5, 3, v0")
    a("v_and_b32 v6, 7, v0")
    a("v_lshlrev_b32 v2, 8, v5")
    a("v_lshl_add_u32 v2, v6, 3, v2")
    a("v_lshlrev_b32 v3, 2, v5")
    a("v_lshlrev_b32 v4, 9, v6")
    a("v_lshl_add_u32 v4, v5, 4, v4")
    a("s_lshl_b32 s52, s7, 8")
    a("s_lshl_b32 s50, s6, 19")
    a("s_add_u32 s50, s50, s52")
    a("s_lshl_b32 s54, s6, 19")
    a("s_lshr_b32 s55, s7, 5")
    a("s_lshl_b32 s55, s55, 13")
    a("s_add_u32 s54, s54, s55")
    a("s_and_b32 s55, s7, 31")
    a("s_lshl_b32 s55, s55, 4")
    a("s_add_u32 s54, s54, s55")
    a(f"s_add_u32 s54, s54, {WS_Q}")
    a("s_add_u32 s55, s54, 4096")
    a("s_waitcnt lgkmcnt(0)")
    srd(a, 12, 36, 37, 4194304)
    srd(a, 16, 40, 41, 524288)
    srd(a, 20, 42, 43, 524288)
    srd(a, 32, 48, 49, 0x10000000)
    for un in range(2):
        for rho in range(2):
            b = 8 + 16 * (2 * un + rho)
            o = un * 2048 + rho * 64
            a(f"buffer_load_dwordx2 v[{b}:{b+1}], v2, s[12:15], s50 offen offset:{o}")
            a(f"buffer_load_dwordx2 v[{b+2}:{b+3}], v2, s[12:15], s50 offen offset:{o+128}")
            a(f"buffer_load_dwordx2 v[{b+8}:{b+9}], v2, s[16:19], s52 offen offset:{o}")
            a(f"buffer_load_dwordx2 v[{b+10}:{b+11}], v2, s[16:19], s52 offen offset:{o+128}")
            a(f"buffer_load_dwordx2 v[{b+12}:{b+13}], v2, s[20:23], s52 offen offset:{o}")
            a(f"buffer_load_dwordx2 v[{b+14}:{b+15}], v2, s[20:23], s52 offen offset:{o+128}")
    a("v_mov_b32 v7, 0xffff0000")
    a(f"s_mov_b32 s60, {f2u(CS):#x}")
    a("v_mov_b32 v96, 0")
    a("v_mov_b32 v97, 0")
    nstores = 0
    for un in range(2):
        for rho in range(2):
            idx = 2 * un + rho
            b = 8 + 16 * idx
            a(f"s_waitcnt vmcnt({nload_after(idx) + nstores})")
            a(f"v_lshlrev_b32 v72, 16, v{b}")
            a(f"v_and_b32 v73, v7, v{b}")
            a(f"v_lshlrev_b32 v74, 16, v{b+1}")
            a(f"v_and_b32 v75, v7, v{b+1}")
            a(f"v_lshlrev_b32 v76, 16, v{b+2}")
            a(f"v_and_b32 v77, v7, v{b+2}")
            a(f"v_lshlrev_b32 v78, 16, v{b+3}")
            a(f"v_and_b32 v79, v7, v{b+3}")
            outr = 100 + 4 * idx
            rope_block(72, 76, True, b + 8, b + 10, b + 12, b + 14, 96 + un, outr, scale="s60")
            so = "s54" if rho == 0 else "s55"
            a(f"buffer_store_dwordx4 v[{outr}:{outr+3}], v4, s[32:35], {so} offen offset:{un*128}")
            nstores += 1
    red8(96); red8(97)
    a("s_lshl_b32 s57, s6, 13")
    a("s_lshl_b32 s58, s7, 2")
    a("s_add_u32 s57, s57, s58")
    a(f"s_add_u32 s57, s57, {WS_N + QN_OFF}")
    a("v_cmp_eq_u32 vcc, 0, v6")
    a("s_and_saveexec_b64 s[62:63], vcc")
    a("buffer_store_dword v96, v3, s[32:35], s57 offen")
    a("buffer_store_dword v97, v3, s[32:35], s57 offen offset:32")
    a("s_endpgm")

    a.lab("P_V")
    a("s_load_dwordx2 s[36:37], s[0:1], 32")
    a("s_load_dwordx2 s[44:45], s[0:1], 40")
    a("s_load_dwordx2 s[46:47], s[0:1], 48")
    a("v_and_b32 v5, 31, v0")
    a("v_lshrrev_b32 v6, 5, v0")
    a("v_lshlrev_b32 v1, 11, v6")
    a("v_lshl_add_u32 v1, v5, 4, v1")
    a("v_lshlrev_b32 v3, 4, v6")
    a("v_lshlrev_b32 v4, 4, v0")
    a("v_lshrrev_b32 v2, 4, v5")
    a("v_lshlrev_b32 v2, 4, v2")
    a("v_sub_u32 v2, 16, v2")
    a("s_lshl_b32 s50, s6, 20")
    a("s_lshl_b32 s51, s7, 9")
    a("s_add_u32 s50, s50, s51")
    a("s_add_u32 s51, s50, 4096")
    a("s_lshl_b32 s53, s6, 13")
    a("s_lshl_b32 s54, s7, 2")
    a("s_add_u32 s53, s53, s54")
    a("s_lshl_b32 s54, s6, 20")
    a("s_lshr_b32 s55, s7, 5")
    a("s_lshl_b32 s55, s55, 14")
    a("s_add_u32 s54, s54, s55")
    a("s_lshr_b32 s55, s7, 4")
    a("s_and_b32 s55, s55, 1")
    a("s_lshl_b32 s55, s55, 12")
    a("s_add_u32 s54, s54, s55")
    a("s_add_u32 s54, s54, 8192")
    a("s_waitcnt lgkmcnt(0)")
    srd(a, 12, 36, 37, 8388608)
    srd(a, 24, 44, 45, 65536)
    srd(a, 28, 46, 47, 65536)
    srd(a, 32, 48, 49, 0x10000000)
    for i in range(2):
        a(f"buffer_load_dwordx4 v[{40+4*i}:{43+4*i}], v3, s[24:27], s53 offen offset:{i*32}")
        a(f"buffer_load_dwordx4 v[{48+4*i}:{51+4*i}], v3, s[28:31], s53 offen offset:{i*32}")
    for j in range(8):
        so = "s50" if j < 4 else "s51"
        a(f"buffer_load_dwordx4 v[{8+4*j}:{11+4*j}], v1, s[12:15], {so} offen offset:{(j%4)*512}")
    a("v_mov_b32 v7, 0xffff0000")
    a("s_waitcnt vmcnt(8)")
    for j in range(8):
        a(f"v_lshlrev_b32 v{40+j}, v2, v{40+j}")
        a(f"v_lshlrev_b32 v{48+j}, v2, v{48+j}")
        a(f"v_and_b32 v{40+j}, v7, v{40+j}")
        a(f"v_and_b32 v{48+j}, v7, v{48+j}")
        a(f"v_mul_f32 v{48+j}, v{48+j}, v{40+j}")
    for j in range(8):
        a(f"s_waitcnt vmcnt({7-j})")
        for b in range(4):
            a(f"v_cvt_f32_i32 v{8+4*j+b}, v{8+4*j+b}")
        for b in range(4):
            a(f"v_fma_f32 v{8+4*j+b}, v{8+4*j+b}, v{40+j}, -v{48+j}")
    for b in range(4):
        o = 56 + 4 * b
        for jj in range(4):
            a(f"v_cvt_pk_bf16_f32 v{o+jj}, v{8+4*(2*jj)+b}, v{8+4*(2*jj+1)+b}")
        a(f"buffer_store_dwordx4 v[{o}:{o+3}], v4, s[32:35], s54 offen offset:{b*1024}")
    a.lab("P_done")
    a("s_endpgm")
    return a.text()

SX, SY, CX, CY, PX, PY = 16, 32, 48, 64, 80, 88
LX, LY = 6, 7
VA = [2, 3, 4, 5]
def buf_list():
    return [("a", 192), ("a", 224), ("v", 96), ("v", 128), ("v", 160), ("v", 192), ("v", 224)]

def gen_attn(NK=3, NV=3, XO=11, pV=None, pK=None, nt=""):
    a = A()
    bufs = buf_list()
    KB = bufs[:NK]; VB = bufs[NK:NK+NV]
    if pV is None: pV = [9 + 2 * j for j in range(8)]
    if pK is None: pK = [25 + 2 * s for s in range(8)]
    def reg(buf, f): return f"{buf[0]}[{buf[1]+4*f}:{buf[1]+4*f+3}]"
    def OX(b): return f"a[{16*b}:{16*b+15}]"
    def OY(b): return f"a[{64+16*b}:{64+16*b+15}]"
    def QX(s): return f"a[{128+4*s}:{128+4*s+3}]"
    def QY(s): return f"a[{160+4*s}:{160+4*s+3}]"
    vr = lambda b, n: f"v[{b}:{b+n-1}]"

    a("s_cmp_ge_u32 s2, 256")
    a("s_cbranch_scc1 A_done")
    a("s_load_dwordx2 s[4:5], s[0:1], 104")
    a("s_load_dwordx2 s[6:7], s[0:1], 88")
    a("v_lshrrev_b32 v1, 6, v0")
    a("v_and_b32 v0, 63, v0")
    a("v_readfirstlane_b32 s8, v1")
    a("s_and_b32 s9, s2, 7")
    a("s_lshr_b32 s10, s2, 3")
    a("v_lshlrev_b32 v2, 4, v0")
    a("v_add_u32 v3, 4096, v2")
    a("v_add_u32 v4, 8192, v2")
    a("v_add_u32 v5, 12288, v2")
    a("s_lshl_b32 s11, s9, 20")
    a("s_lshl_b32 s12, s8, 18")
    a("s_add_u32 s11, s11, s12")
    a("s_lshl_b32 s12, s9, 19")
    a("s_lshl_b32 s13, s10, 14")
    a("s_add_u32 s12, s12, s13")
    a(f"s_add_u32 s12, s12, {WS_Q}")
    a("s_waitcnt lgkmcnt(0)")
    a("s_add_u32 s16, s4, s11"); a("s_addc_u32 s17, s5, 0"); a("s_and_b32 s17, s17, 0xffff")
    a("s_mov_b32 s18, 262144"); a("s_mov_b32 s19, 0x00020000")
    a("s_add_u32 s20, s4, s12"); a("s_addc_u32 s21, s5, 0"); a("s_and_b32 s21, s21, 0xffff")
    a("s_mov_b32 s22, 16384"); a("s_mov_b32 s23, 0x00020000")
    a(f"s_add_u32 s24, s4, {WS_N}"); a("s_addc_u32 s25, s5, 0"); a("s_and_b32 s25, s25, 0xffff")
    a("s_mov_b32 s26, 0x20000"); a("s_mov_b32 s27, 0x00020000")
    srd(a, 28, 6, 7, 4194304)
    a("v_lshlrev_b32 v12, 3, v0")
    a("s_lshl_b32 s32, s9, 9")
    a("buffer_load_dwordx2 v[8:9], v12, s[24:27], s32 offen")
    a("v_and_b32 v13, 31, v0")
    a("v_lshlrev_b32 v12, 2, v13")
    a("s_lshl_b32 s33, s9, 13")
    a("s_lshl_b32 s34, s10, 8")
    a("s_add_u32 s33, s33, s34")
    a(f"s_add_u32 s33, s33, {QN_OFF}")
    a("buffer_load_dword v10, v12, s[24:27], s33 offen")
    a("buffer_load_dword v11, v12, s[24:27], s33 offen offset:128")
    for f in range(16):
        a(f"buffer_load_dwordx4 a[{128+4*f}:{128+4*f+3}], v{VA[f//4]}, s[20:23], 0 offen offset:{(f%4)*1024}")

    NT = 16
    loads = []
    for t in range(NT + 4):
        for jj in range(8): loads.append((32 * (t - NV + 1) + pV[jj], 0, "V", t, jj))
        for s in range(8): loads.append((32 * (t - NK) + pK[s], 1, "K", t, s))
    loads.sort()
    def load_text(kind, t, f, sreg):
        if kind == "K": buf = KB[t % NK]; fi = f
        else: buf = VB[t % NV]; fi = 8 + f
        return f"buffer_load_dwordx4 {reg(buf, f)}, v{VA[fi//4]}, s[16:19], {sreg} offen offset:{(fi%4)*1024}{nt}"
    pro = [l for l in loads if l[0] < 0]
    def emit_pro():
        for (tm, _, kind, t, f) in pro:
            a(f"s_mov_b32 s36, {t*16384}")
            a(load_text(kind, t, f, "s36"))
    emit_pro()
    npro = len(pro)
    for r in range(128): a(f"v_accvgpr_write_b32 a{r}, 0")
    a(f"v_mov_b32 v{LX}, 0"); a(f"v_mov_b32 v{LY}, 0")
    a(f"s_waitcnt vmcnt({16 + npro})")
    a("v_max_f32 v8, v8, v9")
    a("s_nop 1")
    a("v_max_f32_dpp v8, v8, v8 quad_perm:[1,0,3,2] row_mask:0xf bank_mask:0xf"); a("s_nop 1")
    a("v_max_f32_dpp v8, v8, v8 quad_perm:[2,3,0,1] row_mask:0xf bank_mask:0xf"); a("s_nop 1")
    a("v_max_f32_dpp v8, v8, v8 row_half_mirror row_mask:0xf bank_mask:0xf"); a("s_nop 1")
    a("v_max_f32_dpp v8, v8, v8 row_mirror row_mask:0xf bank_mask:0xf"); a("s_nop 1")
    a("v_max_f32_dpp v8, v8, v8 row_bcast:15 row_mask:0xa bank_mask:0xf"); a("s_nop 1")
    a("v_max_f32_dpp v8, v8, v8 row_bcast:31 row_mask:0xc bank_mask:0xf"); a("s_nop 1")
    a("v_readlane_b32 s40, v8, 63")
    a("s_nop 1")
    a("v_mul_f32 v10, s40, v10")
    a("v_mul_f32 v11, s40, v11")
    a("v_sqrt_f32 v10, v10")
    a("v_sqrt_f32 v11, v11")
    a(f"s_mov_b32 s41, {f2u(1.02):#x}")
    a("v_mul_f32 v10, s41, v10")
    a("v_mul_f32 v11, s41, v11")
    a(f"s_mov_b32 s41, {f2u(32.0):#x}")
    a("v_cmp_ge_f32 s[42:43], s41, v10")
    a("v_cmp_ge_f32 s[44:45], s41, v11")
    for r in range(16):
        a(f"v_sub_f32 v{CX+r}, 0, v10")
        a(f"v_sub_f32 v{CY+r}, 0, v11")
    a("s_and_b64 s[42:43], s[42:43], s[44:45]")
    a("s_cmp_eq_u64 s[42:43], -1")
    a("s_cbranch_scc1 A_main")
    a("s_waitcnt vmcnt(0)")
    a("v_mov_b32 v8, 0xff800000"); a("v_mov_b32 v9, 0xff800000")
    a("s_mov_b32 s36, 0")
    a.lab("A_maxloop")
    kb = KB[0]
    for s in range(8):
        a(f"buffer_load_dwordx4 {reg(kb, s)}, v{VA[s//4]}, s[16:19], s36 offen offset:{(s%4)*1024}")
    a("s_waitcnt vmcnt(0)")
    for s in range(8):
        a(f"v_mfma_f32_32x32x16_bf16 {vr(SX,16)}, {reg(kb,s)}, {QX(s)}, {'0' if s==0 else vr(SX,16)}")
    for s in range(8):
        a(f"v_mfma_f32_32x32x16_bf16 {vr(SY,16)}, {reg(kb,s)}, {QY(s)}, {'0' if s==0 else vr(SY,16)}")
    a("s_nop 15")
    for r in range(0, 16, 2):
        a(f"v_max3_f32 v8, v8, v{SX+r}, v{SX+r+1}")
    for r in range(0, 16, 2):
        a(f"v_max3_f32 v9, v9, v{SY+r}, v{SY+r+1}")
    a("s_add_u32 s36, s36, 16384")
    a("s_cmp_lt_u32 s36, 262144")
    a("s_cbranch_scc1 A_maxloop")
    a("v_mov_b32 v10, v8"); a("v_mov_b32 v11, v9"); a("s_nop 1")
    a("v_permlane32_swap_b32 v8, v10"); a("v_permlane32_swap_b32 v9, v11"); a("s_nop 1")
    a("v_max_f32 v8, v8, v10"); a("v_max_f32 v9, v9, v11")
    LDS_MX = 131072 + 1024
    a("v_and_b32 v12, 31, v0"); a("v_lshlrev_b32 v12, 4, v12")
    a("s_lshl_b32 s36, s8, 2"); a("v_add_u32 v14, s36, v12")
    a(f"v_add_u32 v14, {LDS_MX}, v14"); a(f"v_add_u32 v12, {LDS_MX}, v12")
    a("ds_write_b32 v14, v8"); a("ds_write_b32 v14, v9 offset:512")
    a("s_waitcnt lgkmcnt(0)"); a("s_barrier")
    a(f"ds_read_b128 {vr(SX,4)}, v12"); a(f"ds_read_b128 {vr(SY,4)}, v12 offset:512")
    a("s_waitcnt lgkmcnt(0)")
    a(f"v_max3_f32 v8, v{SX}, v{SX+1}, v{SX+2}"); a(f"v_max_f32 v8, v8, v{SX+3}")
    a(f"v_max3_f32 v9, v{SY}, v{SY+1}, v{SY+2}"); a(f"v_max_f32 v9, v9, v{SY+3}")
    for r in range(16):
        a(f"v_sub_f32 v{CX+r}, 0, v8")
        a(f"v_sub_f32 v{CY+r}, 0, v9")
    emit_pro()
    a.lab("A_main")

    issued = [l for l in pro]
    def wait_for(kind, t, f):
        idx = [i for i, l in enumerate(issued) if l[2] == kind and l[3] == t and l[4] == f]
        assert len(idx) == 1, (kind, t, f)
        return len(issued) - 1 - idx[0]
    inloop = [l for l in loads if l[0] >= 0]
    state = {"lastwait": None}
    def period_text(i):
        out = []
        e = out.append
        for j in range(32):
            g = 32 * i + j
            m = None; need = None
            if j < 8 and i < NT:
                m = f"v_mfma_f32_32x32x16_bf16 {vr(SX,16)}, {reg(KB[i%NK], j)}, {QX(j)}, {vr(CX,16) if j==0 else vr(SX,16)}"
                need = ("K", i, j)
            elif 8 <= j < 16 and 1 <= i <= NT:
                jj = j - 8; u, b = jj // 4, jj % 4
                m = f"v_mfma_f32_32x32x16_bf16 {OY(b)}, {reg(VB[(i-1)%NV], jj)}, {vr(PY+4*u,4)}, {OY(b)}"
            elif 16 <= j < 24 and i < NT:
                s = j - 16
                m = f"v_mfma_f32_32x32x16_bf16 {vr(SY,16)}, {reg(KB[i%NK], s)}, {QY(s)}, {vr(CY,16) if s==0 else vr(SY,16)}"
            elif j >= 24 and i < NT:
                jj = j - 24; u, b = jj // 4, jj % 4
                m = f"v_mfma_f32_32x32x16_bf16 {OX(b)}, {reg(VB[i%NV], jj)}, {vr(PX+4*u,4)}, {OX(b)}"
                need = ("V", i, jj)
            if need is not None:
                n = wait_for(*need)
                if need[2] % 2 == 0:
                    n2 = wait_for(need[0], need[1], need[2] + 1)
                    e(f"s_waitcnt vmcnt({min(n, n2, 63)})")
            if m: e(m)
            elif i == 0 and 8 <= j <= 10: e("s_nop 3")
            elif i == NT and j < 12: e("s_nop 0")
            elif i == 0 and j < 16: e("s_nop 0")
            fx = []
            for (S, P, L, base) in ((SX, PX, LX, XO), (SY, PY, LY, 16 + XO)):
                for ii in (i, i - 1):
                    if not (0 <= ii < NT): continue
                    el = g - (32 * ii + base)
                    if 1 <= el <= 16:
                        p = el - 1
                        if p % 2 == 1:
                            fx.append((0, f"v_cvt_pk_bf16_f32 v{P + p//2}, v{S+p-1}, v{S+p}"))
                        fx.append((1, f"v_add_f32 v{L}, v{L}, v{S+p}"))
                    if 0 <= el < 16:
                        fx.append((2, f"v_exp_f32 v{S+el}, v{S+el}"))
            fx.sort()
            for _, t in fx: e(t)
            for l in inloop:
                if l[0] == g:
                    sreg = "s37" if l[2] == "K" else "s38"
                    if l[4] == 0:
                        e(f"s_add_u32 {sreg}, {sreg}, 16384")
                    e(load_text(l[2], l[3], l[4], sreg))
                    issued.append(l)
        return out
    firstK = [l for l in inloop if l[2] == "K"][0]; firstV = [l for l in inloop if l[2] == "V"][0]
    def init_soff(first, sreg):
        t, f = first[3], first[4]
        a(f"s_mov_b32 {sreg}, {(t if f != 0 else t - 1) * 16384}")
    init_soff(firstK, "s37"); init_soff(firstV, "s38")
    U = NK * NV // math.gcd(NK, NV)
    p0 = period_text(0)
    for t in p0: a(t)
    nloop = 15 // U
    body = None
    i = 1
    for it in range(nloop):
        txt = []
        for k in range(U):
            txt += period_text(i); i += 1
        if body is None: body = txt
        else: assert txt == body, "loop body not periodic"
    a(f"s_mov_b32 s39, {nloop}")
    a.lab("A_loop")
    for t in body: a(t)
    a("s_sub_u32 s39, s39, 1")
    a("s_cmp_lg_u32 s39, 0")
    a("s_cbranch_scc1 A_loop")
    while i <= NT:
        txt = period_text(i)
        if i == NT:
            pass
        for t in txt: a(t)
        i += 1

    a("s_waitcnt vmcnt(0)")
    a(f"v_mov_b32 v8, v{LX}"); a(f"v_mov_b32 v9, v{LY}"); a("s_nop 1")
    a(f"v_permlane32_swap_b32 v{LX}, v8"); a(f"v_permlane32_swap_b32 v{LY}, v9"); a("s_nop 1")
    a(f"v_add_f32 v{LX}, v{LX}, v8"); a(f"v_add_f32 v{LY}, v{LY}, v9")
    LDS_L = 131072
    a("v_and_b32 v12, 31, v0"); a("v_lshlrev_b32 v12, 4, v12")
    a("s_lshl_b32 s36, s8, 2"); a("v_add_u32 v14, s36, v12")
    a(f"v_add_u32 v14, {LDS_L}, v14"); a(f"v_add_u32 v12, {LDS_L}, v12")
    a(f"ds_write_b32 v14, v{LX}"); a(f"ds_write_b32 v14, v{LY} offset:512")
    a("s_lshl_b32 s36, s8, 13")
    a("v_add_u32 v13, s36, v2")
    a("s_nop 7")
    a("s_nop 7")
    for wp in range(4):
        a(f"s_cmp_eq_u32 s8, {wp}")
        a(f"s_cbranch_scc1 A_own{wp}")
        a(f"v_add_u32 v15, {wp*32768}, v13")
        for qb in range(2):
            for b in range(4):
                r = qb * 64 + b * 16 + 4 * wp
                a(f"ds_write_b128 v15, a[{r}:{r+3}] offset:{(qb*4+b)*1024}")
        a(f"s_branch A_next{wp}")
        a.lab(f"A_own{wp}")
        for qb in range(2):
            for b in range(4):
                for rho in range(4):
                    a(f"v_accvgpr_read_b32 v{96 + (qb*4+b)*4 + rho}, a{qb*64 + b*16 + 4*wp + rho}")
        a.lab(f"A_next{wp}")
    a("s_waitcnt lgkmcnt(0)")
    a("s_barrier")
    a(f"ds_read_b128 {vr(SX,4)}, v12"); a(f"ds_read_b128 {vr(SY,4)}, v12 offset:512")
    for k in range(1, 4):
        a(f"s_add_u32 s36, s8, {k}"); a("s_and_b32 s36, s36, 3")
        a("s_lshl_b32 s37, s8, 2"); a("s_add_u32 s36, s36, s37"); a("s_lshl_b32 s36, s36, 13")
        a("v_add_u32 v15, s36, v2")
        for item in range(8):
            r = 128 + (k - 1) * 32 + item * 4
            a(f"ds_read_b128 v[{r}:{r+3}], v15 offset:{item*1024}")
    a("s_waitcnt lgkmcnt(15)")
    a(f"v_add_f32 v8, v{SX}, v{SX+1}"); a(f"v_add_f32 v8, v8, v{SX+2}"); a(f"v_add_f32 v8, v8, v{SX+3}")
    a(f"v_add_f32 v9, v{SY}, v{SY+1}"); a(f"v_add_f32 v9, v9, v{SY+2}"); a(f"v_add_f32 v9, v9, v{SY+3}")
    a("v_rcp_f32 v8, v8"); a("v_rcp_f32 v9, v9")
    a("s_waitcnt lgkmcnt(0)")
    for k in range(3):
        for r in range(32):
            a(f"v_add_f32 v{96+r}, v{96+r}, v{128+32*k+r}")
    for qb in range(2):
        for r in range(16):
            a(f"v_mul_f32 v{96+qb*16+r}, v{96+qb*16+r}, v{8+qb}")
    a("v_and_b32 v12, 31, v0"); a("v_lshlrev_b32 v12, 8, v12")
    a("v_lshrrev_b32 v13, 5, v0"); a("v_lshl_add_u32 v12, v13, 5, v12")
    a("s_lshl_b32 s36, s9, 19"); a("s_lshl_b32 s37, s10, 14"); a("s_add_u32 s36, s36, s37")
    a("s_lshl_b32 s37, s8, 6"); a("s_add_u32 s36, s36, s37")
    a("s_add_u32 s37, s36, 8192")
    for qb in range(2):
        for n in range(8):
            rho, b0 = n // 2, 2 * (n % 2)
            r0 = 96 + (qb * 4 + b0) * 4 + rho; r1 = 96 + (qb * 4 + b0 + 1) * 4 + rho
            a(f"v_cvt_pk_bf16_f32 v{16 + qb*8 + n}, v{r0}, v{r1}")
        so = "s36" if qb == 0 else "s37"
        a(f"buffer_store_dwordx4 v[{16+qb*8}:{19+qb*8}], v12, s[28:31], {so} offen")
        a(f"buffer_store_dwordx4 v[{20+qb*8}:{23+qb*8}], v12, s[28:31], {so} offen offset:16")
    a.lab("A_done")
    a("s_endpgm")
    return a.text()

def gen(NK=3, NV=3, **kw):
    s = header(["kernel=kvprep_kernel grid=(768,1,1) block=(256,1,1) lds=0",
                f"kernel={KN} grid=(256,1,1) block=(256,1,1) lds={131072+2048}"])
    s += kernel_begin("kvprep_kernel") + gen_prep()
    s += kernel_begin(KN) + gen_attn(NK, NV, **kw)
    s += kernel_desc("kvprep_kernel", 116, sgpr=72)
    s += kernel_desc(KN, 512, sgpr=64, accum=256)
    return s

if __name__ == "__main__":
    print(gen())
```
